```python
import torch

def _softmax(x, axis=-1):
    return torch.softmax(x, dim=axis)

def _gelu(x):
    return torch.nn.functional.gelu(x, approximate='tanh')

def _silu(x):
    return torch.nn.functional.silu(x)

def _sigmoid(x):
    return torch.sigmoid(x)

def _layernorm(x, axis=-1, eps=1e-05):
    m = x.mean(dim=axis, keepdim=True)
    v = x.var(dim=axis, keepdim=True, unbiased=False)
    return (x - m) / torch.sqrt(v + eps)

def _scatter_add(tgt, idx, src, axis=0):
    return tgt.clone().index_add_(axis, idx, src)

def _segment_sum(src, seg, n):
    out = torch.zeros((n,) + src.shape[1:], dtype=src.dtype)
    return out.index_add_(0, seg, src)

def _pad(x, pw):
    flat = tuple((v for pair in reversed(pw) for v in pair))
    return torch.nn.functional.pad(x, flat)
kernel_name = 'standalone__molecular_angular_painn__graph'

def setup_inputs():

    _w = lambda a: (lambda t: t.to(torch.bfloat16) if t.is_floating_point() else t)(torch.as_tensor(a))
    N, deg, D = (25000, 16, 128)
    n_rbf = max(16, 4)
    E = N * deg
    cutoff = 5.0
    freqs = (torch.arange(1, n_rbf + 1) * torch.pi / cutoff).to(float)
    return {'sv': _w((lambda *s: torch.randn(*s, dtype=torch.bfloat16) * 0.4)(N, 4, D) * 0.3), 'pos': _w((lambda *s: torch.randn(*s, dtype=torch.bfloat16) * 3.2)(N, 3) * 1.2), 'src': _w((lambda lo, hi, *s: torch.randint(lo, hi, s))(0, N, E).to(torch.int64)), 'dst': _w((lambda lo, hi, *s: torch.randint(lo, hi, s))(0, N, E).to(torch.int64)), 'freqs': _w(freqs), 'w_phi1': _w((lambda *s: torch.randn(*s, dtype=torch.bfloat16) * 3.2)(D, D) / D ** 0.5), 'w_phi2': _w((lambda *s: torch.randn(*s, dtype=torch.bfloat16) * 3.2)(D, 3 * D) / D ** 0.5), 'w_rbf': _w((lambda *s: torch.randn(*s, dtype=torch.bfloat16) * 3.2)(n_rbf, 3 * D) / n_rbf ** 0.5)}

def reference(sv, pos, src, dst, freqs, w_phi1, w_phi2, w_rbf):
    N, _, D = sv.shape
    E = src.shape[0]
    PI, cutoff = (3.141592653589793, 5.0)
    s, v = (sv[:, 0, :].clone(), sv[:, 1:, :].clone())
    r_vec = pos[src] - pos[dst]
    d = torch.sqrt((r_vec * r_vec).sum(-1) + 1e-08)
    r_hat = r_vec / d[:, None]
    rbf = torch.sin(d[:, None] * freqs[None, :]) / d[:, None]
    fcut = 0.5 * (torch.cos(PI * d / cutoff) + 1.0)
    fcut = torch.where(d < cutoff, fcut, 0.0 * d)
    Wf = rbf @ w_rbf * fcut[:, None]
    phi = (_silu(s @ w_phi1) @ w_phi2)[src]
    m = phi * Wf
    m_s, m_vv, m_vr = (m[:, :D].clone(), m[:, D:2 * D].clone(), m[:, 2 * D:].clone())
    ds = _segment_sum(m_s, dst, N)
    dv_e = m_vv[:, None, :] * v[src] + m_vr[:, None, :] * r_hat[:, :, None]
    dv = _segment_sum(dv_e.reshape(E, 3 * D), dst, N).reshape(N, 3, D)
    return sv + torch.concatenate([ds[:, None, :], dv], axis=1)
```

```python
HEAD=0; W1A=0x20000; W2A=0x28000; WRP=0x40000; PHI=0x100000; REC=0x2000000
o=[]
A=o.append
hdr=open('cdna_kernels/standalone__molecular_angular_painn__graph.s.ref').read().split('\n')
for l in hdr:
    if l.startswith('; @launch'): break
    A(l)
A('; @launch kernel=k0_kernel grid=(256,1,1) block=(256,1,1) lds=0')
A('; @launch kernel=k1_kernel grid=(1759,1,1) block=(256,1,1) lds=0')
A('; @launch kernel=standalone__molecular_angular_painn__graph_kernel grid=(6250,1,1) block=(256,1,1) lds=0')
A('.amdgcn_target "amdgcn-amd-amdhsa--gfx950"\n.text')
A('''.macro RND2 a, b, t
    v_cvt_pk_bf16_f32 \\t, \\a, \\b
    v_lshlrev_b32 \\a, 16, \\t
    v_and_b32 \\b, 0xffff0000, \\t
.endm
.macro SRD d, p, off, sz
    s_add_u32 s[\\d], s[\\p], \\off
    s_addc_u32 s[\\d+1], s[\\p+1], 0
    s_mov_b32 s[\\d+2], \\sz
    s_mov_b32 s[\\d+3], 0x00020000
.endm''')
A('''.globl k0_kernel
.p2align 8
.type k0_kernel,@function
k0_kernel:
    s_cmp_ge_u32 s2, 256
    s_cbranch_scc1 k0_end
    s_load_dwordx2 s[4:5], s[0:1], 40
    s_load_dwordx2 s[6:7], s[0:1], 48
    s_load_dwordx2 s[8:9], s[0:1], 56
    s_load_dwordx2 s[10:11], s[0:1], 80
    s_waitcnt lgkmcnt(0)
    SRD 12, 4, 0, 32768
    SRD 16, 6, 0, 98304
    SRD 20, 8, 0, 12288
    SRD 24, 10, 0, 0x10000000
    s_lshl_b32 s3, s2, 8
    v_add_u32 v1, s3, v0            ; t 0..65535
    v_lshlrev_b32 v2, 2, v1
    v_mov_b32 v3, -1
    v_cmp_gt_u32 vcc, 25000, v1
    s_and_saveexec_b64 s[30:31], vcc
    buffer_store_dword v3, v2, s[24:27], 0 offen
    s_mov_b64 exec, s[30:31]
    ; decode: n = t>>7 (0..511), p = t&127
    v_lshrrev_b32 v4, 7, v1
    v_and_b32 v5, 127, v1
    v_lshlrev_b32 v6, 8, v5
    v_lshl_add_u32 v6, v4, 1, v6
    v_cmp_gt_u32 vcc, 128, v4
    s_and_saveexec_b64 s[30:31], vcc
    buffer_load_ushort v7, v6, s[12:15], 0 offen
    v_lshlrev_b32 v8, 1, v1
    v_add_u32 v8, 0x20000, v8
    s_waitcnt vmcnt(0)
    buffer_store_short v7, v8, s[24:27], 0 offen
    s_mov_b64 exec, s[30:31]
    v_subrev_u32 v9, 128, v4
    v_and_b32 v10, 7, v5           ; j
    v_bfe_u32 v11, v5, 3, 1        ; h
    v_and_b32 v12, 3, v10
    v_lshl_add_u32 v12, v11, 2, v12   ; 4h + (j&3)
    v_lshrrev_b32 v13, 2, v10
    v_lshl_add_u32 v12, v13, 3, v12   ; + 8*(j>>2)
    v_and_b32 v13, 0x70, v5
    v_add_u32 v12, v13, v12        ; k
    v_mul_u32_u24 v12, 768, v12
    v_lshl_add_u32 v12, v9, 1, v12
    v_cmp_le_u32 vcc, 128, v4
    s_and_saveexec_b64 s[30:31], vcc
    buffer_load_ushort v7, v12, s[16:19], 0 offen
    v_lshlrev_b32 v8, 1, v1
    v_add_u32 v8, 0x20000, v8      ; W2A = W1A+32768 contiguous
    s_waitcnt vmcnt(0)
    buffer_store_short v7, v8, s[24:27], 0 offen
    s_mov_b64 exec, s[30:31]
    v_lshrrev_b32 v4, 9, v1
    v_and_b32 v5, 511, v1
    v_cmp_gt_u32 vcc, 384, v5
    v_cmp_gt_u32 s[32:33], 8, v4
    s_and_b64 vcc, vcc, s[32:33]
    s_and_saveexec_b64 s[30:31], vcc
    s_cbranch_execz k0_end
    v_mul_u32_u24 v6, 1536, v4
    v_lshl_add_u32 v6, v5, 1, v6
    buffer_load_ushort v7, v6, s[20:23], 0 offen
    buffer_load_ushort v8, v6, s[20:23], 0 offen offset:768
    v_mul_u32_u24 v6, 1536, v4
    v_lshl_add_u32 v6, v5, 2, v6
    v_add_u32 v6, 0x40000, v6
    s_waitcnt vmcnt(0)
    v_lshl_or_b32 v7, v8, 16, v7
    buffer_store_dword v7, v6, s[24:27], 0 offen
k0_end:
    s_endpgm''')
A('''.globl k1_kernel
.p2align 8
.type k1_kernel,@function
k1_kernel:
    s_cmp_ge_u32 s2, 1759
    s_cbranch_scc1 k1_end
    s_load_dwordx2 s[4:5], s[0:1], 0
    s_load_dwordx2 s[6:7], s[0:1], 8
    s_load_dwordx2 s[8:9], s[0:1], 16
    s_load_dwordx2 s[10:11], s[0:1], 24
    s_load_dwordx2 s[36:37], s[0:1], 32
    s_load_dwordx2 s[38:39], s[0:1], 80
    s_waitcnt lgkmcnt(0)
    s_load_dwordx8 s[40:47], s[36:37], 0
    SRD 12, 4, 0, 25600000
    SRD 16, 6, 0, 150000
    SRD 20, 8, 0, 1600000
    SRD 24, 10, 0, 1600000
    SRD 28, 38, 0, 0x10000000
    s_cmp_ge_u32 s2, 196
    s_cbranch_scc1 k1_edges
    v_lshrrev_b32 v1, 6, v0
    s_lshl_b32 s3, s2, 2
    v_add_u32 v1, s3, v1
    v_and_b32 v2, 31, v0          ; l&31
    v_bfe_u32 v3, v0, 5, 1        ; h
    v_lshl_add_u32 v4, v1, 5, v2  ; node
    v_lshlrev_b32 v5, 10, v4
    v_lshl_add_u32 v5, v3, 4, v5
    v_lshlrev_b32 v6, 8, v2
    v_lshl_add_u32 v6, v3, 4, v6
    v_add_u32 v6, 0x20000, v6''')
for ks in range(8):
    A(f'    buffer_load_dwordx4 v[{16+4*ks}:{19+4*ks}], v5, s[12:15], 0 offen offset:{32*ks}')
for t in range(4):
    for i in range(16): A(f'    v_mov_b32 v{64+16*t+i}, 0')
for t in range(4):
    A(f'    s_mov_b32 s48, {t*8192}')
    for ks in range(8):
        A(f'    buffer_load_dwordx4 v[{128+4*ks}:{131+4*ks}], v6, s[28:31], s48 offen offset:{32*ks}')
    A('    s_waitcnt vmcnt(0)')
    for ks in range(8):
        A(f'    v_mfma_f32_32x32x16_bf16 v[{64+16*t}:{79+16*t}], v[{128+4*ks}:{131+4*ks}], v[{16+4*ks}:{19+4*ks}], v[{64+16*t}:{79+16*t}]')
A('    s_nop 15\n    s_nop 7')
for t in range(4):
    for i in range(0,16,2):
        a=64+16*t+i; b=a+1
        A(f'    RND2 v{a}, v{b}, v8')
        for r in (a,b):
            A(f'    v_mul_f32 v9, 0xbfb8aa3b, v{r}\n    v_exp_f32 v9, v9\n    s_nop 0\n    v_add_f32 v9, 1.0, v9\n    v_rcp_f32 v9, v9\n    s_nop 0\n    v_mul_f32 v{r}, v{r}, v9')
        A(f'    v_cvt_pk_bf16_f32 v{16+8*t+i//2}, v{a}, v{b}')
A('''    v_mul_u32_u24 v7, 768, v4
    v_lshl_add_u32 v7, v3, 3, v7
    v_add_u32 v7, 0x100000, v7
    s_nop 1''')
for t in range(12):
    A(f'    s_mov_b32 s48, {0x8000+t*8192}')
    for ks in range(8):
        A(f'    buffer_load_dwordx4 v[{128+4*ks}:{131+4*ks}], v6, s[28:31], s48 offen offset:{32*ks}')
    for i in range(16): A(f'    v_mov_b32 v{64+i}, 0')
    A('    s_waitcnt vmcnt(0)')
    for ks in range(8):
        A(f'    v_mfma_f32_32x32x16_bf16 v[64:79], v[{128+4*ks}:{131+4*ks}], v[{16+4*ks}:{19+4*ks}], v[64:79]')
    A('    s_nop 15\n    s_nop 7')
    for g in range(4):
        A(f'    v_cvt_pk_bf16_f32 v80, v{64+4*g}, v{65+4*g}\n    v_cvt_pk_bf16_f32 v81, v{66+4*g}, v{67+4*g}')
        A(f'    buffer_store_dwordx2 v[80:81], v7, s[28:31], 0 offen offset:{64*t+16*g}\n    s_nop 1')
A('    s_endpgm')
A('''k1_edges:
    s_sub_u32 s3, s2, 196
    s_lshl_b32 s3, s3, 8
    v_add_u32 v1, s3, v0          ; e
    s_mov_b32 s49, 400000
    v_cmp_gt_u32 vcc, s49, v1
    s_and_saveexec_b64 s[50:51], vcc
    s_cbranch_execz k1_end
    v_lshlrev_b32 v2, 2, v1
    buffer_load_dword v3, v2, s[20:23], 0 offen   ; src
    buffer_load_dword v4, v2, s[24:27], 0 offen   ; dst
    s_waitcnt vmcnt(0)
    v_mul_u32_u24 v5, 6, v3
    v_mul_u32_u24 v6, 6, v4
    buffer_load_ushort v8, v5, s[16:19], 0 offen
    buffer_load_ushort v9, v5, s[16:19], 0 offen offset:2
    buffer_load_ushort v10, v5, s[16:19], 0 offen offset:4
    buffer_load_ushort v11, v6, s[16:19], 0 offen
    buffer_load_ushort v12, v6, s[16:19], 0 offen offset:2
    buffer_load_ushort v13, v6, s[16:19], 0 offen offset:4
    s_waitcnt vmcnt(0)''')
for i in range(6): A(f'    v_lshlrev_b32 v{8+i}, 16, v{8+i}')
A('''    v_sub_f32 v8, v8, v11
    v_sub_f32 v9, v9, v12
    v_sub_f32 v10, v10, v13
    RND2 v8, v9, v14
    RND2 v10, v11, v14
    v_mul_f32 v12, v8, v8
    v_mul_f32 v13, v9, v9
    v_mul_f32 v15, v10, v10
    RND2 v12, v13, v14
    RND2 v15, v16, v14
    v_add_f32 v12, v12, v13
    v_add_f32 v12, v12, v15
    RND2 v12, v13, v14
    v_add_f32 v12, 0x322bcc77, v12
    RND2 v12, v13, v14
    v_sqrt_f32 v12, v12
    s_nop 0
    RND2 v12, v13, v14            ; d
    v_cmp_gt_f32 vcc, 0x40a00000, v12
    s_and_saveexec_b64 s[52:53], vcc
    s_cbranch_execz k1_end
    v_rcp_f32 v13, v12
    s_nop 0
    v_mul_f32 v18, v8, v13
    v_mul_f32 v19, v9, v13
    v_mul_f32 v20, v10, v13
    RND2 v18, v19, v14
    RND2 v20, v21, v14
    v_mul_f32 v21, 0x40490fdb, v12
    RND2 v21, v22, v14
    v_mul_f32 v21, 0x3e4ccccd, v21
    RND2 v21, v22, v14
    v_mul_f32 v21, 0.15915494, v21
    v_fract_f32 v21, v21
    v_cos_f32 v21, v21
    s_nop 0
    RND2 v21, v22, v14
    v_add_f32 v21, 1.0, v21
    RND2 v21, v22, v14
    v_mul_f32 v21, 0.5, v21
    s_waitcnt lgkmcnt(0)''')
for j in range(8):
    A(f'''    s_lshl_b32 s54, s{40+j}, 16
    s_and_b32 s55, s{40+j}, 0xffff0000
    v_mul_f32 v32, s54, v12
    v_mul_f32 v33, s55, v12
    RND2 v32, v33, v14
    v_mul_f32 v32, 0.15915494, v32
    v_mul_f32 v33, 0.15915494, v33
    v_fract_f32 v32, v32
    v_fract_f32 v33, v33
    v_sin_f32 v32, v32
    v_sin_f32 v33, v33
    s_nop 0
    RND2 v32, v33, v14
    v_mul_f32 v32, v32, v13
    v_mul_f32 v33, v33, v13
    v_cvt_pk_bf16_f32 v{24+j}, v32, v33''')
A('''    v_mov_b32 v17, v1
    v_lshlrev_b32 v6, 2, v4
    buffer_atomic_swap v17, v6, s[28:31], 0 offen sc0
    v_mov_b32 v16, v3
    v_lshlrev_b32 v7, 6, v1
    v_add_u32 v7, 0x2000000, v7
    v_mov_b32 v22, 0
    v_mov_b32 v23, 0
    s_waitcnt vmcnt(0)
    buffer_store_dwordx4 v[16:19], v7, s[28:31], 0 offen
    buffer_store_dwordx4 v[20:23], v7, s[28:31], 0 offen offset:16
    buffer_store_dwordx4 v[24:27], v7, s[28:31], 0 offen offset:32
    buffer_store_dwordx4 v[28:31], v7, s[28:31], 0 offen offset:48
k1_end:
    s_endpgm''')
A('''.globl standalone__molecular_angular_painn__graph_kernel
.p2align 8
.type standalone__molecular_angular_painn__graph_kernel,@function
standalone__molecular_angular_painn__graph_kernel:
    s_cmp_ge_u32 s2, 6250
    s_cbranch_scc1 k2_end
    s_load_dwordx2 s[4:5], s[0:1], 0
    s_load_dwordx2 s[6:7], s[0:1], 64
    s_load_dwordx2 s[8:9], s[0:1], 80
    v_lshrrev_b32 v1, 6, v0
    s_nop 0
    v_readfirstlane_b32 s3, v1
    s_lshl_b32 s10, s2, 2
    s_add_u32 s3, s3, s10          ; node
    s_lshl_b32 s10, s3, 2
    s_waitcnt lgkmcnt(0)
    s_add_u32 s36, s8, s10
    s_addc_u32 s37, s9, 0
    s_load_dword s34, s[36:37], 0   ; head
    SRD 12, 4, 0, 25600000
    SRD 16, 6, 0, 25600000
    SRD 20, 8, 0, 0x10000000
    SRD 24, 8, 0x100000, 0x1f00000
    s_add_u32 s38, s8, 0x2000000
    s_addc_u32 s39, s9, 0
    v_and_b32 v1, 63, v0
    v_lshlrev_b32 v1, 2, v1        ; 4*lane
    s_lshl_b32 s11, s3, 10''')
for q in range(4): A(f'    buffer_load_dword v{2+q}, v1, s[12:15], s11 offen offset:{256*q}')
for q in range(8): A(f'    v_mov_b32 v{8+q}, 0')
A('''    s_waitcnt lgkmcnt(0)
    s_cmp_eq_u32 s34, -1
    s_cbranch_scc1 k2_fin
    v_lshlrev_b32 v6, 1, v1
    v_add_u32 v6, 0x40000, v6''')
for j in range(8):
    for sg in range(3):
        r=64+ (j*3+sg)*2
        A(f'    s_mov_b32 s62, {j*1536}\n    buffer_load_dwordx2 v[{r}:{r+1}], v6, s[20:23], s62 offen offset:{sg*512}')
A('''k2_loop:
    s_lshl_b32 s40, s34, 6
    s_add_u32 s40, s38, s40
    s_addc_u32 s41, s39, 0
    s_load_dwordx16 s[44:59], s[40:41], 0
    s_waitcnt lgkmcnt(0)
    s_mul_i32 s42, s44, 768
    s_lshl_b32 s43, s44, 10''')
for q in range(3): A(f'    buffer_load_dword v{16+q}, v1, s[24:27], s42 offen offset:{256*q}')
for q in range(3): A(f'    buffer_load_dword v{19+q}, v1, s[12:15], s43 offen offset:{256*(q+1)}')
for c in range(6): A(f'    v_mov_b32 v{24+c}, 0')
A('    s_waitcnt vmcnt(0)')
for j in range(8):
    A(f'    s_lshl_b32 s60, s{52+j}, 16\n    s_and_b32 s61, s{52+j}, 0xffff0000')
    for sg in range(3):
      for q in range(2):
        r=64+(j*3+sg)*2+q
        A(f'    v_lshlrev_b32 v31, 16, v{r}\n    v_and_b32 v32, 0xffff0000, v{r}\n    v_fma_f32 v{24+2*sg+q}, v31, s60, v{24+2*sg+q}\n    v_fma_f32 v{24+2*sg+q}, v32, s61, v{24+2*sg+q}')
for sg in range(3):
    a=24+2*sg
    A(f'''    RND2 v{a}, v{a+1}, v30
    v_mul_f32 v{a}, s49, v{a}
    v_mul_f32 v{a+1}, s49, v{a+1}
    RND2 v{a}, v{a+1}, v30
    v_lshlrev_b32 v31, 16, v{16+sg}
    v_and_b32 v32, 0xffff0000, v{16+sg}
    v_mul_f32 v{a}, v{a}, v31
    v_mul_f32 v{a+1}, v{a+1}, v32
    RND2 v{a}, v{a+1}, v30''')
A('    v_add_f32 v8, v8, v24\n    v_add_f32 v9, v9, v25')
for x in range(3):
    A(f'''    v_lshlrev_b32 v31, 16, v{19+x}
    v_and_b32 v32, 0xffff0000, v{19+x}
    v_mul_f32 v31, v26, v31
    v_mul_f32 v32, v27, v32
    RND2 v31, v32, v30
    v_mul_f32 v33, s{46+x}, v28
    v_mul_f32 v34, s{46+x}, v29
    RND2 v33, v34, v30
    v_add_f32 v31, v31, v33
    v_add_f32 v32, v32, v34
    RND2 v31, v32, v30
    v_add_f32 v{10+2*x}, v{10+2*x}, v31
    v_add_f32 v{11+2*x}, v{11+2*x}, v32''')
A('''    s_mov_b32 s34, s45
    s_cmp_lg_u32 s34, -1
    s_cbranch_scc1 k2_loop
k2_fin:
    s_waitcnt vmcnt(0)''')
for q in range(4):
    a=8+2*q
    A(f'''    RND2 v{a}, v{a+1}, v30
    v_lshlrev_b32 v31, 16, v{2+q}
    v_and_b32 v32, 0xffff0000, v{2+q}
    v_add_f32 v31, v31, v{a}
    v_add_f32 v32, v32, v{a+1}
    v_cvt_pk_bf16_f32 v{2+q}, v31, v32
    buffer_store_dword v{2+q}, v1, s[16:19], s11 offen offset:{256*q}''')
A('k2_end:\n    s_endpgm')
A('.section .rodata,"a"')
for k,v in (('k0_kernel',32),('k1_kernel',160),('standalone__molecular_angular_painn__graph_kernel',112)):
    A(f'''.p2align 6
.amdhsa_kernel {k}
  .amdhsa_next_free_vgpr {v}
  .amdhsa_next_free_sgpr 102
  .amdhsa_accum_offset {v}
  .amdhsa_group_segment_fixed_size 0
  .amdhsa_kernarg_size 88
  .amdhsa_user_sgpr_count 2
  .amdhsa_user_sgpr_kernarg_segment_ptr 1
  .amdhsa_system_sgpr_workgroup_id_x 1
.end_amdhsa_kernel''')
open('cdna_kernels/standalone__molecular_angular_painn__graph.s','w').write('\n'.join(o)+'\n')
```
